```python
import torch

def _softmax(x, axis=-1):
    return torch.softmax(x, dim=axis)
def _gelu(x):
    return torch.nn.functional.gelu(x, approximate="tanh")
def _silu(x):
    return torch.nn.functional.silu(x)
def _sigmoid(x):
    return torch.sigmoid(x)
def _layernorm(x, axis=-1, eps=1e-5):
    m = x.mean(dim=axis, keepdim=True)
    v = x.var(dim=axis, keepdim=True, unbiased=False)
    return (x - m) / torch.sqrt(v + eps)
def _scatter_add(tgt, idx, src, axis=0):
    return tgt.clone().index_add_(axis, idx, src)
def _segment_sum(src, seg, n):
    out = torch.zeros((n,) + src.shape[1:], dtype=src.dtype)
    return out.index_add_(0, seg, src)
def _pad(x, pw):
    flat = tuple(v for pair in reversed(pw) for v in pair)
    return torch.nn.functional.pad(x, flat)

kernel_name = 'recurrent_scan__sliding_block_cached__dense_activation_relu__prompt'

def setup_inputs():

    _w = (lambda a: (lambda t: t.to(torch.bfloat16) if t.is_floating_point() else t)(torch.as_tensor(a)))
    def _A_setup():
        B, Sq, D = 1, 2048, 1024
        Hq, Hkv, Sk, Dh = 32, 4, 2048, 128
        assert Hq % Hkv == 0, (Hq, Hkv)
        return {
            "x": _w((lambda *s: torch.randn(*s, dtype=torch.bfloat16) * 0.05)(B, Sq, D)),
            "k_cache": _w((lambda *s: torch.randn(*s, dtype=torch.bfloat16) * 0.8)(B, Hkv, Sk, Dh)),
            "v_cache": _w((lambda *s: torch.randn(*s, dtype=torch.bfloat16) * 0.2)(B, Hkv, Sk, Dh)),
            "wq": _w((lambda *s: torch.randn(*s, dtype=torch.bfloat16) * 0.8)(D, Hq * Dh) * (D ** -0.5)),
            "wo": _w((lambda *s: torch.randn(*s, dtype=torch.bfloat16) * 0.2)(Hq * Dh, D) * ((Hq * Dh) ** -0.5)),
        }
    _A_in = _A_setup()

    def _B_setup():
        B, S, D, Dff = 1, 2048, 1024, 3584
        return {
            "x": _w((lambda *s: torch.randn(*s, dtype=torch.bfloat16) * 0.05)(B, S, D)),
            "w1": _w((lambda *s: torch.randn(*s, dtype=torch.bfloat16) * 0.1)(D, Dff)),
            "w2": _w((lambda *s: torch.randn(*s, dtype=torch.bfloat16) * 0.1)(Dff, D)),
        }
    _B_in = _B_setup()

    return {
        "A_x": _A_in["x"],
        "A_k_cache": _A_in["k_cache"],
        "A_v_cache": _A_in["v_cache"],
        "A_wq": _A_in["wq"],
        "A_wo": _A_in["wo"],
        "B_x": _B_in["x"],
        "B_w1": _B_in["w1"],
        "B_w2": _B_in["w2"],
    }

def reference(A_x, A_k_cache, A_v_cache, A_wq, A_wo, B_x, B_w1, B_w2):
    def _A_ref(x, k_cache, v_cache, wq, wo):
        B, Sq, D = x.shape
        Hq, Dh = 32, 128
        Hkv, Sk = k_cache.shape[1], k_cache.shape[2]
        W = min(4096, max(256, Sk // 4))
        rep = Hq // Hkv
        q = (lambda x, *d: x.permute(*d))((x @ wq).reshape(B, Sq, Hq, Dh), 0, 2, 1, 3)
        k = (lambda x, n, axis: torch.repeat_interleave(x, n, dim=axis))(k_cache[:, :, Sk - W:, :], rep, axis=1)
        v = (lambda x, n, axis: torch.repeat_interleave(x, n, dim=axis))(v_cache[:, :, Sk - W:, :], rep, axis=1)
        scores = torch.einsum("bhqd,bhkd->bhqk", q, k) * (Dh ** -0.5)
        p = _softmax(scores, axis=-1)
        o = torch.einsum("bhqk,bhkd->bhqd", p, v)
        return (lambda x, *d: x.permute(*d))(o, 0, 2, 1, 3).reshape(B, Sq, Hq * Dh) @ wo

    def _B_ref(x, w1, w2):
        h = torch.einsum("bsd,df->bsf", x, w1)
        zero = torch.zeros_like(h)
        h = torch.maximum(h, zero)
        return torch.einsum("bsf,fd->bsd", h, w2)

    x = A_x
    xn = _layernorm(x, axis=-1)
    s = _A_ref(xn, A_k_cache, A_v_cache, A_wq, A_wo)
    g = _silu(_B_ref(xn, B_w1, B_w2))
    return x + s * g
```

```python
import copy
import re

TRANS = {"v_exp_f32", "v_log_f32", "v_rcp_f32", "v_rsq_f32", "v_sqrt_f32", "v_sin_f32", "v_cos_f32",
         "v_rcp_iflag_f32", "v_exp_f16", "v_log_f16", "v_rcp_f16", "v_rsq_f16", "v_sqrt_f16"}

MFMA_PASSES = {"32x32x16_bf16": 8, "16x16x32_bf16": 4, "32x32x16_f16": 8, "16x16x32_f16": 4,
               "32x32x8_bf16": 8, "16x16x16_bf16": 4, "32x32x2_f32": 16, "16x16x4_f32": 8}

D_TO_OTHER = {2: 5, 4: 8, 8: 12, 16: 20}
D_TO_C_OVERLAP = {2: 4, 4: 6, 8: 10, 16: 18}
C_WAR = {2: 1, 4: 3, 8: 7, 16: 15}


def _split_ops(s):
    out, depth, cur = [], 0, ""
    for ch in s:
        if ch in "[(":
            depth += 1
        elif ch in "])":
            depth -= 1
        if ch == "," and depth == 0:
            out.append(cur.strip())
            cur = ""
        else:
            cur += ch
    if cur.strip():
        out.append(cur.strip())
    return out


_REG_RE = re.compile(r"^(v|s|a)(\d+)$")
_RNG_RE = re.compile(r"^(v|s|a)\[(\d+):(\d+)\]$")


def regs_of(tok):
    t = tok.strip()
    changed = True
    while changed:
        changed = False
        if t.startswith("-"):
            t = t[1:].strip(); changed = True
        if t.startswith("abs(") and t.endswith(")"):
            t = t[4:-1].strip(); changed = True
        if t.startswith("neg(") and t.endswith(")"):
            t = t[4:-1].strip(); changed = True
        if t.startswith("|") and t.endswith("|"):
            t = t[1:-1].strip(); changed = True
    m = _REG_RE.match(t)
    if m:
        return [(m.group(1), int(m.group(2)))]
    m = _RNG_RE.match(t)
    if m:
        return [(m.group(1), i) for i in range(int(m.group(2)), int(m.group(3)) + 1)]
    if t == "vcc":
        return [("vcc", 0), ("vcc", 1)]
    if t == "vcc_lo":
        return [("vcc", 0)]
    if t == "vcc_hi":
        return [("vcc", 1)]
    if t == "exec":
        return [("exec", 0)]
    if t == "m0":
        return [("m0", 0)]
    return []


class Insn:
    __slots__ = ("text", "mn", "ops", "mods", "cls", "rd", "wr", "passes", "srcc", "srcab", "wide_store",
                 "is_dma", "nopn", "memkind", "trans")

    def __init__(self, text):
        self.text = text.strip()
        parts = self.text.split(None, 1)
        self.mn = parts[0]
        rest = parts[1] if len(parts) > 1 else ""
        ops = _split_ops(rest)
        mods = []
        if ops:
            last = ops[-1].split()
            ops[-1] = last[0] if last else ""
            mods = last[1:]
        self.ops = ops
        self.mods = mods
        self.passes = 0
        self.srcc = []
        self.srcab = []
        self.wide_store = False
        self.is_dma = False
        self.nopn = 1
        self.memkind = None
        self.trans = False
        self._classify()

    def _classify(self):
        mn, ops, mods = self.mn, self.ops, self.mods
        R = lambda l: [r for t in l for r in regs_of(t)]
        rd, wr = [], []
        base = mn
        for suf in ("_e32", "_e64", "_dpp", "_sdwa"):
            if base.endswith(suf):
                base = base[: -len(suf)]
        if mn.startswith("v_mfma") or mn.startswith("v_smfmac"):
            self.cls = "mfma"
            for k, p in MFMA_PASSES.items():
                if mn.endswith(k):
                    self.passes = p
            assert self.passes, "unknown mfma " + mn
            wr = R(ops[:1])
            self.srcab = R(ops[1:3])
            self.srcc = R(ops[3:4])
            rd = self.srcab + self.srcc
        elif mn.startswith("v_"):
            self.cls = "valu"
            self.trans = base in TRANS
            if base.startswith("v_cmpx"):
                raise ValueError("v_cmpx not supported by the DSL")
            if base.startswith("v_cmp"):
                wr = R(ops[:1]); rd = R(ops[1:])
            elif base in ("v_readfirstlane_b32", "v_readlane_b32"):
                wr = R(ops[:1]); rd = R(ops[1:])
            elif base == "v_writelane_b32":
                wr = R(ops[:1]); rd = R(ops)
            elif base in ("v_permlane32_swap_b32", "v_permlane16_swap_b32", "v_swap_b32"):
                wr = R(ops); rd = R(ops)
            elif base.startswith("v_fmac") or base.startswith("v_pk_fmac") or base.startswith("v_dot2c"):
                wr = R(ops[:1]); rd = R(ops)
            elif base in ("v_add_co_u32", "v_sub_co_u32", "v_subrev_co_u32"):
                wr = R(ops[:2]); rd = R(ops[2:])
            elif base in ("v_addc_co_u32", "v_subb_co_u32", "v_subbrev_co_u32"):
                wr = R(ops[:2]); rd = R(ops[2:])
            elif base in ("v_div_scale_f32", "v_mad_u64_u32", "v_mad_i64_i32"):
                wr = R(ops[:2]); rd = R(ops[2:])
            elif base == "v_div_fmas_f32":
                wr = R(ops[:1]); rd = R(ops[1:]) + [("vcc", 0), ("vcc", 1)]
            elif base == "v_cndmask_b32":
                wr = R(ops[:1]); rd = R(ops[1:])
                if len(ops) == 3:
                    rd += [("vcc", 0), ("vcc", 1)]
            elif base == "v_nop":
                pass
            else:
                wr = R(ops[:1]); rd = R(ops[1:])
        elif mn.startswith("ds_"):
            self.cls = "ds"
            self.memkind = "ds"
            if mn.startswith("ds_read") or mn in ("ds_bpermute_b32", "ds_permute_b32", "ds_swizzle_b32"):
                wr = R(ops[:1]); rd = R(ops[1:])
            elif mn.startswith("ds_write"):
                rd = R(ops)
            else:
                raise ValueError("ds op not handled: " + mn)
        elif mn.startswith("buffer_") or mn.startswith("global_") or mn.startswith("flat_"):
            self.cls = "vmem"
            self.memkind = "vm"
            if mn in ("buffer_wbl2", "buffer_inv"):
                pass
            elif mn.startswith("buffer_load"):
                if "lds" in mods:
                    self.is_dma = True
                    rd = R(ops) + [("m0", 0)]
                else:
                    wr = R(ops[:1]); rd = R(ops[1:])
            elif mn.startswith("buffer_store"):
                rd = R(ops)
                self.wide_store = mn.endswith("x4") or mn.endswith("x3")
            elif mn.startswith("buffer_atomic"):
                rd = R(ops)
                if "sc0" in mods:
                    wr = R(ops[:1])
            elif mn.startswith("global_load_lds"):
                self.is_dma = True
                rd = R(ops) + [("m0", 0)]
            elif mn.startswith("global_load"):
                wr = R(ops[:1]); rd = R(ops[1:])
            elif mn.startswith("global_store"):
                rd = R(ops)
                self.wide_store = mn.endswith("x4") or mn.endswith("x3")
            elif mn.startswith("global_atomic"):
                if "sc0" in mods:
                    wr = R(ops[:1]); rd = R(ops[1:])
                else:
                    rd = R(ops)
            else:
                raise ValueError("vmem op not handled: " + mn)
        elif mn.startswith("s_load") or mn.startswith("s_buffer_load"):
            self.cls = "smem"
            self.memkind = "sm"
            wr = R(ops[:1]); rd = R(ops[1:])
        elif mn.startswith("s_"):
            self.cls = "salu"
            if mn == "s_nop":
                self.nopn = int(ops[0], 0) + 1
            elif mn in ("s_waitcnt", "s_barrier", "s_endpgm", "s_branch", "s_setprio", "s_sleep", "s_sethalt"):
                pass
            elif mn.startswith("s_cbranch"):
                pass
            elif mn.startswith("s_cmp") or mn.startswith("s_bitcmp"):
                rd = R(ops)
            elif mn.endswith("saveexec_b64"):
                wr = R(ops[:1]) + [("exec", 0)]; rd = R(ops[1:]) + [("exec", 0)]
            else:
                wr = R(ops[:1]); rd = R(ops[1:])
        else:
            raise ValueError("unknown instruction: " + self.text)
        self.rd = rd
        self.wr = wr


class State:
    def __init__(self):
        self.t = 0
        self.valu_w = {}
        self.trans_w = {}
        self.mfma_w = {}
        self.mfma_c = {}
        self.valu_sw = {}
        self.m0_w = None
        self.wstore = {}
        self.vmq = []
        self.lgq = []
        self.vm_imprecise = False
        self.lg_imprecise = False


class Kernel:
    def __init__(self, name, autowait=True):
        self.name = name
        self.lines = []
        self.st = State()
        self.autowait = autowait
        self.nv = 0
        self.ns = 0
        self.na = 0
        self.dry = False
        self.stats = {"nops": 0, "waits": 0}
        self.maxv = -1
        self.maxa = -1
        self.maxs = -1

    def valloc(self, n, align=1):
        self.nv = (self.nv + align - 1) // align * align
        b = self.nv
        self.nv += n
        return b

    def salloc(self, n, align=1):
        self.ns = (self.ns + align - 1) // align * align
        b = self.ns
        self.ns += n
        assert self.ns <= 102, "out of sgprs"
        return b

    def raw(self, text):
        self.lines.append(text)

    def label(self, name):
        self.lines.append(name + ":")

    def comment(self, text):
        self.lines.append("    ; " + text)

    def _out(self, ins):
        self.lines.append("    " + ins.text)
        self._commit(ins)

    def _need_nops(self, ins):
        st = self.st
        t = st.t
        need = 0

        def req(tp, n):
            nonlocal need
            if tp is None:
                return
            gap = t - tp - 1
            if gap < n:
                need = max(need, n - gap)

        vec = lambda r: r[0] in ("v", "a")
        sca = lambda r: r[0] in ("s", "vcc")
        rdv = [r for r in ins.rd if vec(r)]
        wrv = [r for r in ins.wr if vec(r)]
        if ins.cls == "mfma":
            for r in rdv:
                req(st.valu_w.get(r), 2)
            dst = tuple(ins.wr)
            for r in ins.srcc:
                w = st.mfma_w.get(r)
                if w:
                    if w[2] == tuple(ins.srcc) and w[1] == ins.passes and w[1] >= 4:
                        pass
                    else:
                        req(w[0], D_TO_C_OVERLAP[w[1]])
            for r in ins.srcab:
                w = st.mfma_w.get(r)
                if w:
                    req(w[0], D_TO_OTHER[w[1]])
            for r in wrv:
                if r not in ins.srcc:
                    w = st.mfma_w.get(r)
                    if w:
                        req(w[0], D_TO_OTHER[w[1]])
        else:
            if ins.cls in ("valu", "ds", "vmem"):
                for r in rdv + wrv:
                    w = st.mfma_w.get(r)
                    if w:
                        req(w[0], D_TO_OTHER[w[1]])
            if ins.cls == "valu":
                for r in wrv:
                    c = st.mfma_c.get(r)
                    if c:
                        req(c[0], C_WAR[c[1]])
                    req(st.wstore.get(r), 2)
                if not ins.trans:
                    for r in rdv:
                        req(st.trans_w.get(r), 1)
                base = ins.mn
                if base.startswith("v_readfirstlane") or base.startswith("v_readlane"):
                    for r in rdv:
                        req(st.valu_w.get(r), 1)
                if "permlane" in base or "_dpp" in base or any(m.startswith("row_") or m.startswith("quad_perm")
                                                               or m.startswith("wave_") for m in ins.mods):
                    for r in rdv:
                        req(st.valu_w.get(r), 2)
                for r in ins.rd:
                    if sca(r):
                        n = 2
                        if base.startswith("v_readlane") or base.startswith("v_writelane") or base.startswith("v_div_fmas"):
                            n = 4
                        req(st.valu_sw.get(r), n)
            if ins.cls in ("vmem",):
                for r in ins.rd:
                    if sca(r):
                        req(st.valu_sw.get(r), 5)
                if ins.is_dma:
                    req(st.m0_w, 1)
                for r in wrv:
                    req(st.wstore.get(r), 1)
            if ins.cls == "ds":
                for r in wrv:
                    req(st.wstore.get(r), 1)
            if ins.cls in ("salu", "smem"):
                for r in ins.rd:
                    if sca(r):
                        req(st.valu_sw.get(r), 3)
        return need

    def _commit(self, ins):
        st = self.st
        t = st.t
        for r in ins.rd + ins.wr:
            if r[0] == "v":
                self.maxv = max(self.maxv, r[1])
            elif r[0] == "a":
                self.maxa = max(self.maxa, r[1])
            elif r[0] == "s":
                self.maxs = max(self.maxs, r[1])
        if ins.cls == "mfma":
            dst = tuple(ins.wr)
            for r in ins.wr:
                st.mfma_w[r] = (t, ins.passes, dst)
                st.valu_w.pop(r, None); st.trans_w.pop(r, None)
            for r in ins.srcc:
                st.mfma_c[r] = (t, ins.passes)
        elif ins.cls == "valu":
            for r in ins.wr:
                if r[0] in ("v", "a"):
                    st.valu_w[r] = t
                    st.mfma_w.pop(r, None)
                    if ins.trans:
                        st.trans_w[r] = t
                    else:
                        st.trans_w.pop(r, None)
                elif r[0] in ("s", "vcc"):
                    st.valu_sw[r] = t
        elif ins.cls == "salu":
            for r in ins.wr:
                if r[0] == "m0":
                    st.m0_w = t
                st.valu_sw.pop(r, None)
        if ins.wide_store:
            for r in ins.rd:
                if r[0] in ("v", "a"):
                    st.wstore[r] = t
        if ins.memkind == "vm":
            st.vmq.append(frozenset(ins.wr))
            for r in ins.wr:
                st.valu_w.pop(r, None); st.trans_w.pop(r, None); st.mfma_w.pop(r, None)
        elif ins.memkind == "ds":
            st.lgq.append((frozenset(ins.wr), False))
            for r in ins.wr:
                st.valu_w.pop(r, None); st.trans_w.pop(r, None); st.mfma_w.pop(r, None)
        elif ins.memkind == "sm":
            st.lgq.append((frozenset(ins.wr), True))
        st.t += ins.nopn
        if st.t % 512 == 0:
            self._prune()

    def _prune(self):
        st = self.st
        lim = st.t - 40
        st.valu_w = {k: v for k, v in st.valu_w.items() if v >= lim}
        st.trans_w = {k: v for k, v in st.trans_w.items() if v >= lim}
        st.mfma_w = {k: v for k, v in st.mfma_w.items() if v[0] >= lim}
        st.mfma_c = {k: v for k, v in st.mfma_c.items() if v[0] >= lim}
        st.valu_sw = {k: v for k, v in st.valu_sw.items() if v >= lim}
        st.wstore = {k: v for k, v in st.wstore.items() if v >= lim}

    def _apply_wait(self, vm=None, lgkm=None):
        st = self.st
        if vm is not None:
            if vm == 0:
                st.vmq = []; st.vm_imprecise = False
            elif len(st.vmq) > vm and not st.vm_imprecise:
                st.vmq = st.vmq[len(st.vmq) - vm:]
        if lgkm is not None:
            if lgkm == 0:
                st.lgq = []; st.lg_imprecise = False
            elif len(st.lgq) > lgkm and not st.lg_imprecise and not any(s for _, s in st.lgq):
                st.lgq = st.lgq[len(st.lgq) - lgkm:]

    def _auto_waits(self, ins):
        st = self.st
        touched = set(ins.rd) | set(ins.wr)
        vm_n = None
        lg_n = None
        for i in range(len(st.vmq) - 1, -1, -1):
            if st.vmq[i] & touched:
                vm_n = 0 if st.vm_imprecise else len(st.vmq) - 1 - i
                break
        for i in range(len(st.lgq) - 1, -1, -1):
            if st.lgq[i][0] & touched:
                anysm = any(s for _, s in st.lgq)
                lg_n = 0 if (st.lg_imprecise or anysm) else len(st.lgq) - 1 - i
                break
        if vm_n is None and lg_n is None:
            return
        if vm_n is not None:
            vm_n = min(vm_n, 63)
        if lg_n is not None:
            lg_n = min(lg_n, 15)
        self.wait(vm=vm_n, lgkm=lg_n, auto=True)

    def wait(self, vm=None, lgkm=None, auto=False):
        parts = []
        if vm is not None:
            parts.append("vmcnt(%d)" % vm)
        if lgkm is not None:
            parts.append("lgkmcnt(%d)" % lgkm)
        assert parts
        ins = Insn("s_waitcnt " + " ".join(parts))
        self.lines.append("    " + ins.text + ("   ; auto" if auto else ""))
        self.st.t += 1
        self._apply_wait(vm, lgkm)
        self.stats["waits"] += 1

    def __call__(self, text):
        if isinstance(text, (list, tuple)):
            for x in text:
                self(x)
            return
        if "\n" in text:
            for x in text.split("\n"):
                x = x.split(";")[0].strip()
                if x:
                    self(x)
            return
        text = text.split(";")[0].strip()
        if not text:
            return
        if text.endswith(":"):
            self.label(text[:-1])
            return
        ins = Insn(text)
        if ins.mn == "s_waitcnt":
            vm = lg = None
            for m in re.finditer(r"(vmcnt|lgkmcnt|expcnt)\((\d+)\)", text):
                if m.group(1) == "vmcnt":
                    vm = int(m.group(2))
                elif m.group(1) == "lgkmcnt":
                    lg = int(m.group(2))
            self.wait(vm=vm, lgkm=lg)
            return
        if self.autowait:
            self._auto_waits(ins)
        n = self._need_nops(ins)
        while n > 0:
            k = min(n, 16)
            nop = Insn("s_nop %d" % (k - 1))
            self.lines.append("    " + nop.text + "   ; hazard")
            self._commit(nop)
            self.stats["nops"] += k
            n -= k
        self._out(ins)

    def imprecise(self):
        self.st.vm_imprecise = True
        self.st.lg_imprecise = True

    def loop(self, label, body):
        entry = copy.deepcopy(self.st)
        merged = copy.deepcopy(entry)
        saved_lines = self.lines
        saved_stats = dict(self.stats)
        saved_alloc = (self.nv, self.ns, self.na)
        for it in range(4):
            self.lines = []
            self.st = copy.deepcopy(merged)
            self.nv, self.ns, self.na = saved_alloc
            body()
            end = self.st
            new = self._merge(entry, end)
            if self._same(new, merged):
                break
            merged = new
        else:
            raise RuntimeError("loop state did not converge: " + label)
        self.lines = saved_lines
        self.stats = saved_stats
        self.nv, self.ns, self.na = saved_alloc
        self.st = copy.deepcopy(merged)
        self.label(label)
        body()
        e = self.st
        assert [set(x) for x in e.vmq] == [set(x) for x in merged.vmq], \
            "loop %s: vm queue mismatch head=%s end=%s" % (label, merged.vmq, e.vmq)
        assert [set(x[0]) for x in e.lgq] == [set(x[0]) for x in merged.lgq], \
            "loop %s: lgkm queue mismatch head=%s end=%s" % (label, merged.lgq, e.lgq)

    @staticmethod
    def _merge(entry, end):
        m = copy.deepcopy(entry)
        shift = entry.t - end.t
        def mx(d_m, d_e, pick=lambda v: v, put=lambda v, t: t):
            for k, v in d_e.items():
                tt = pick(v) + shift
                if k not in d_m or pick(d_m[k]) < tt:
                    d_m[k] = put(v, tt)
        mx(m.valu_w, end.valu_w)
        mx(m.trans_w, end.trans_w)
        mx(m.mfma_w, end.mfma_w, lambda v: v[0], lambda v, t: (t, v[1], v[2]))
        mx(m.mfma_c, end.mfma_c, lambda v: v[0], lambda v, t: (t, v[1]))
        mx(m.valu_sw, end.valu_sw)
        mx(m.wstore, end.wstore)
        if end.m0_w is not None:
            tt = end.m0_w + shift
            if m.m0_w is None or m.m0_w < tt:
                m.m0_w = tt
        m.vm_imprecise = entry.vm_imprecise or end.vm_imprecise
        m.lg_imprecise = entry.lg_imprecise or end.lg_imprecise
        return m

    @staticmethod
    def _same(a, b):
        return (a.valu_w == b.valu_w and a.trans_w == b.trans_w and a.mfma_w == b.mfma_w and a.mfma_c == b.mfma_c
                and a.valu_sw == b.valu_sw and a.wstore == b.wstore and a.m0_w == b.m0_w
                and a.vm_imprecise == b.vm_imprecise and a.lg_imprecise == b.lg_imprecise)

    def text(self, vgprs=None, accum_offset=None, sgprs=None, extra_desc=""):
        arch = self.maxv + 1
        acc = self.maxa + 1
        if accum_offset is None:
            accum_offset = max(4, (arch + 3) // 4 * 4)
        assert accum_offset >= arch and accum_offset % 4 == 0 and accum_offset <= 256, (arch, accum_offset)
        if vgprs is None:
            vgprs = accum_offset + acc if acc > 0 else arch
        assert vgprs >= accum_offset + acc or acc == 0
        if sgprs is None:
            sgprs = min(102, max(self.maxs + 1, 16))
        code = [".text", ".globl %s" % self.name, ".p2align 8", ".type %s,@function" % self.name,
                "%s:" % self.name]
        code += self.lines
        desc = [".section .rodata,\"a\"", ".p2align 6", ".amdhsa_kernel %s" % self.name,
                "  .amdhsa_next_free_vgpr %d" % vgprs,
                "  .amdhsa_next_free_sgpr %d" % sgprs,
                "  .amdhsa_accum_offset %d" % accum_offset,
                "  .amdhsa_group_segment_fixed_size 0",
                "  .amdhsa_kernarg_size 88",
                "  .amdhsa_user_sgpr_count 2",
                "  .amdhsa_user_sgpr_kernarg_segment_ptr 1",
                "  .amdhsa_system_sgpr_workgroup_id_x 1"]
        if extra_desc:
            desc.append(extra_desc)
        desc.append(".end_amdhsa_kernel")
        return "\n".join(code + desc) + "\n"


def interleave(main, side, pattern=None, start=0):
    out = []
    n = len(main)
    m = len(side)
    j = 0
    slots = max(1, n - start)
    for i, x in enumerate(main):
        out.append(x)
        if i >= start:
            want = (m * (i - start + 1) + slots - 1) // slots
            while j < min(want, m):
                out.append(side[j]); j += 1
    while j < m:
        out.append(side[j]); j += 1
    return out
```

```python
import sys
import os
sys.path.insert(0, os.path.dirname(os.path.abspath(__file__)))
from asmdsl import Kernel, interleave

OUT_PATH = "recurrent_scan__sliding_block_cached__dense_activation_relu__prompt.s"

HEADER = """; Kernarg layout for this problem (88 bytes, ptrs only, base s[0:1]):
"""

M = 2048
D = 1024
HQ = 32
DH = 128
NQ = HQ * DH
DFF = 3584
SK = 2048
WIN = 512

MB = 1 << 20
WS_XN = 0
WS_Q = 4 * MB
WS_H = 20 * MB
WS_O = 36 * MB
WS_S = 52 * MB
WS_Y = 56 * MB
SZ_XN = M * D * 2
SZ_Q = M * NQ * 2
SZ_H = M * DFF * 2
SZ_O = M * NQ * 2
SZ_S = M * D * 2
SZ_Y = M * D * 2

ARG_X, ARG_K, ARG_V, ARG_WQ, ARG_WO, ARG_BX, ARG_W1, ARG_W2, ARG_OUT, ARG_DBG, ARG_WS = [8 * i for i in range(11)]


def srd(k, sb, plo, off, size):
    if off:
        k("s_add_u32 s%d, s%d, 0x%x" % (sb, plo, off))
        k("s_addc_u32 s%d, s%d, 0" % (sb + 1, plo + 1))
    else:
        k("s_mov_b32 s%d, s%d" % (sb, plo))
        k("s_mov_b32 s%d, s%d" % (sb + 1, plo + 1))
    k("s_mov_b32 s%d, 0x%x" % (sb + 2, size))
    k("s_mov_b32 s%d, 0x00020000" % (sb + 3))


def fbits(x):
    import struct
    return "0x%08x" % struct.unpack("<I", struct.pack("<f", x))[0]


def rne_bf16_as_f32(k, dst, src):
    k("v_cvt_pk_bf16_f32 v%d, v%d, v%d" % (dst, src, src))
    k("v_lshlrev_b32 v%d, 16, v%d" % (dst, dst))


def wave_sum(k, v, tmp):
    for off in (0x041F, 0x081F, 0x101F, 0x201F, 0x401F):
        k("ds_swizzle_b32 v%d, v%d offset:0x%04x" % (tmp, v, off))
        k("v_add_f32 v%d, v%d, v%d" % (v, v, tmp))
    k("v_mov_b32 v%d, v%d" % (tmp, v))
    k("v_permlane32_swap_b32 v%d, v%d" % (v, tmp))
    k("v_add_f32 v%d, v%d, v%d" % (v, v, tmp))


def gen_ln():
    k = Kernel("ln_kernel")
    k("s_load_dwordx2 s[4:5], s[0:1], %d" % ARG_X)
    k("s_load_dwordx2 s[6:7], s[0:1], %d" % ARG_WS)
    k("s_cmp_ge_u32 s2, %d" % (M // 4))
    k("s_cbranch_scc1 L_ln_end")
    k("s_waitcnt lgkmcnt(0)")
    srd(k, 8, 4, 0, M * D * 2)
    srd(k, 12, 6, WS_XN, SZ_XN)
    k("v_lshrrev_b32 v1, 6, v0")
    k("s_lshl_b32 s16, s2, 2")
    k("v_add_u32 v1, s16, v1")
    k("v_lshlrev_b32 v1, 11, v1")
    k("v_and_b32 v2, 63, v0")
    k("v_lshlrev_b32 v2, 4, v2")
    k("v_add_u32 v1, v1, v2")
    k("buffer_load_dwordx4 v[4:7], v1, s[8:11], 0 offen")
    k("buffer_load_dwordx4 v[8:11], v1, s[8:11], 0 offen offset:1024")
    X = 16
    for j in range(8):
        k("v_lshlrev_b32 v%d, 16, v%d" % (X + 2 * j, 4 + j))
        k("v_and_b32 v%d, 0xffff0000, v%d" % (X + 2 * j + 1, 4 + j))
    k("v_add_f32 v32, v16, v17")
    k("v_add_f32 v33, v18, v19")
    for j in range(4, 16, 2):
        k("v_add_f32 v32, v32, v%d" % (X + j))
        k("v_add_f32 v33, v33, v%d" % (X + j + 1))
    k("v_add_f32 v32, v32, v33")
    wave_sum(k, 32, 33)
    k("v_mul_f32 v32, %s, v32" % fbits(1.0 / D))
    k("v_mov_b32 v34, 0")
    k("v_mov_b32 v35, 0")
    for j in range(16):
        k("v_sub_f32 v36, v%d, v32" % (X + j))
        k("v_fmac_f32 v%d, v36, v36" % (34 + (j & 1)))
    k("v_add_f32 v34, v34, v35")
    wave_sum(k, 34, 35)
    k("v_mul_f32 v34, %s, v34" % fbits(1.0 / D))
    rne_bf16_as_f32(k, 32, 32)
    rne_bf16_as_f32(k, 34, 34)
    k("v_add_f32 v34, %s, v34" % fbits(1e-5))
    rne_bf16_as_f32(k, 34, 34)
    k("v_sqrt_f32 v34, v34")
    rne_bf16_as_f32(k, 34, 34)
    k("v_rcp_f32 v35, v34")
    for j in range(16):
        k("v_sub_f32 v%d, v%d, v32" % (X + j, X + j))
    for j in range(8):
        a, b = X + 2 * j, X + 2 * j + 1
        k("v_cvt_pk_bf16_f32 v40, v%d, v%d" % (a, b))
        k("v_lshlrev_b32 v%d, 16, v40" % a)
        k("v_and_b32 v%d, 0xffff0000, v40" % b)
    for j in range(16):
        a = X + j
        k("v_mul_f32 v%d, v%d, v35" % (48 + j, a))
    for j in range(16):
        a = X + j
        k("v_fma_f32 v%d, -v%d, v34, v%d" % (a, 48 + j, a))
    for j in range(16):
        a = X + j
        k("v_fmac_f32 v%d, v%d, v35" % (48 + j, a))
    for j in range(8):
        k("v_cvt_pk_bf16_f32 v%d, v%d, v%d" % (4 + j, 48 + 2 * j, 48 + 2 * j + 1))
    k("buffer_store_dwordx4 v[4:7], v1, s[12:15], 0 offen")
    k("buffer_store_dwordx4 v[8:11], v1, s[12:15], 0 offen offset:1024")
    k.label("L_ln_end")
    k("s_endpgm")
    return k, (M // 4, 1, 1), (256, 1, 1), 0


KERNELS = [gen_ln]


def main():
    ks = [g() for g in KERNELS]
    out = HEADER
    for kk, grid, block, lds in ks:
        out += "; @launch kernel=%s grid=(%d,%d,%d) block=(%d,%d,%d) lds=%d\n" % (
            kk.name, grid[0], grid[1], grid[2], block[0], block[1], block[2], lds)
    out += '.amdgcn_target "amdgcn-amd-amdhsa--gfx950"\n'
    for kk, grid, block, lds in ks:
        out += kk.text()
    path = sys.argv[1] if len(sys.argv) > 1 else OUT_PATH
    open(path, "w").write(out)
    for kk, grid, block, lds in ks:
        print(kk.name, "grid", grid, "lds", lds, "vgpr", kk.maxv + 1, "agpr", kk.maxa + 1, "sgpr", kk.maxs + 1,
              "lines", len(kk.lines), kk.stats)


if __name__ == "__main__":
    main()
```

```python
import sys
sys.path.insert(0, "dev")
from asmdsl import Kernel

HEAD = '.amdgcn_target "amdgcn-amd-amdhsa--gfx950"\n'

def prologue(k):
    k("s_load_dwordx2 s[4:5], s[0:1], 0")
    k("s_load_dwordx2 s[6:7], s[0:1], 8")
    k("s_waitcnt lgkmcnt(0)")
    k("s_mov_b32 s8, s4"); k("s_mov_b32 s9, s5"); k("s_mov_b32 s10, 65536"); k("s_mov_b32 s11, 0x00020000")
    k("s_mov_b32 s12, s6"); k("s_mov_b32 s13, s7"); k("s_mov_b32 s14, 65536"); k("s_mov_b32 s15, 0x00020000")

def test_tr():
    k = Kernel("t_tr_kernel")
    prologue(k)
    k("v_lshlrev_b32 v1, 4, v0")
    for j in range(8):
        k("s_movk_i32 s16, %d" % (1024 * j))
        k("buffer_load_dwordx4 v[%d:%d], v1, s[8:11], s16 offen" % (4 + 4 * j, 7 + 4 * j))
    for j in range(8):
        k("v_add_u32 v2, %d, v1" % (1024 * j))
        k("ds_write_b128 v2, v[%d:%d]" % (4 + 4 * j, 7 + 4 * j))
    k("s_waitcnt lgkmcnt(0)")
    k("s_barrier")
    k("v_lshlrev_b32 v3, 3, v0")
    k("ds_read_b64_tr_b16 v[40:41], v3")
    k("s_waitcnt lgkmcnt(0)")
    k("buffer_store_dwordx2 v[40:41], v3, s[12:15], 0 offen")
    k("s_endpgm")
    return k

def test_dma():
    k = Kernel("t_dma_kernel")
    prologue(k)
    k("v_mov_b32 v4, 0"); k("v_mov_b32 v5, 0"); k("v_mov_b32 v6, 0"); k("v_mov_b32 v7, 0")
    k("v_lshlrev_b32 v1, 4, v0")
    for j in range(4):
        k("v_add_u32 v2, %d, v1" % (1024 * j))
        k("ds_write_b128 v2, v[4:7]")
    k("s_waitcnt lgkmcnt(0)")
    k("s_barrier")
    k("v_lshlrev_b32 v3, 5, v0")
    k("s_movk_i32 s16, 64")
    k("s_movk_i32 s17, 256")
    k("s_mov_b32 m0, s17")
    k("buffer_load_dwordx4 v3, s[8:11], s16 offen offset:16 lds")
    k("s_waitcnt vmcnt(0)")
    k("s_barrier")
    for j in range(4):
        k("v_add_u32 v2, %d, v1" % (1024 * j))
        k("ds_read_b128 v[8:11], v2")
        k("buffer_store_dwordx4 v[8:11], v2, s[12:15], 0 offen")
    k("s_endpgm")
    return k

def test_mfma():
    k = Kernel("t_mfma_kernel")
    prologue(k)
    k("v_and_b32 v1, 31, v0")
    k("v_lshlrev_b32 v1, 5, v1")
    k("v_lshrrev_b32 v2, 5, v0")
    k("v_lshlrev_b32 v2, 4, v2")
    k("v_add_u32 v1, v1, v2")
    k("buffer_load_dwordx4 v[4:7], v1, s[8:11], 0 offen")
    k("s_movk_i32 s16, 1024")
    k("buffer_load_dwordx4 v[8:11], v1, s[8:11], s16 offen")
    for i in range(16):
        k("v_mov_b32 v%d, 0" % (16 + i))
    k("v_mfma_f32_32x32x16_bf16 v[16:31], v[4:7], v[8:11], v[16:31]")
    k("v_lshlrev_b32 v3, 6, v0")
    for j in range(4):
        k("buffer_store_dwordx4 v[%d:%d], v3, s[12:15], 0 offen offset:%d" % (16 + 4 * j, 19 + 4 * j, 16 * j))
    k("s_endpgm")
    return k

def test_misc():
    k = Kernel("t_misc_kernel")
    prologue(k)
    k("v_cvt_f32_u32 v4, v0")
    k("s_mov_b32 s16, 0x447a0000")
    k("v_add_f32 v5, s16, v4")
    k("v_cvt_pk_bf16_f32 v6, v4, v5")
    k("v_mov_b32 v7, v0")
    k("v_add_u32 v8, 100, v0")
    k("v_permlane32_swap_b32 v7, v8")
    k("v_lshlrev_b32 v3, 4, v0")
    k("v_mov_b32 v9, 0")
    k("buffer_store_dwordx4 v[6:9], v3, s[12:15], 0 offen")
    k("s_endpgm")
    return k

if __name__ == "__main__":
  pass
ks = [test_tr(), test_dma(), test_mfma(), test_misc()]
out = ""
for kk in ks:
    out += "; @launch kernel=%s grid=(1,1,1) block=(64,1,1) lds=16384\n" % kk.name
out += HEAD
for kk in ks:
    out += kk.text()
open("mt1.s", "w").write(out)
print("ok", [ (kk.name, kk.stats) for kk in ks])
```

```python
import sys
sys.path.insert(0, "dev")
from asmdsl import Kernel
from mt.gen_mt1 import prologue
k = Kernel("t_p16_kernel")
prologue(k)
k("v_mov_b32 v7, v0")
k("v_add_u32 v8, 100, v0")
k("v_permlane16_swap_b32 v7, v8")
k("v_mov_b32 v6, 0x8001c123")
k("v_pk_max_i16 v9, v6, 0")
k("v_lshlrev_b32 v3, 4, v0")
k("v_mov_b32 v6, 0")
k("buffer_store_dwordx4 v[6:9], v3, s[12:15], 0 offen")
k("s_endpgm")
out = "; @launch kernel=%s grid=(1,1,1) block=(64,1,1) lds=0\n" % k.name + '.amdgcn_target "amdgcn-amd-amdhsa--gfx950"\n' + k.text()
open("mt2.s", "w").write(out)
```
